```python
import torch

def _softmax(x, axis=-1):
    return torch.softmax(x, dim=axis)
def _gelu(x):
    return torch.nn.functional.gelu(x, approximate="tanh")
def _silu(x):
    return torch.nn.functional.silu(x)
def _sigmoid(x):
    return torch.sigmoid(x)
def _layernorm(x, axis=-1, eps=1e-5):
    m = x.mean(dim=axis, keepdim=True)
    v = x.var(dim=axis, keepdim=True, unbiased=False)
    return (x - m) / torch.sqrt(v + eps)
def _scatter_add(tgt, idx, src, axis=0):
    return tgt.clone().index_add_(axis, idx, src)
def _segment_sum(src, seg, n):
    out = torch.zeros((n,) + src.shape[1:], dtype=src.dtype)
    return out.index_add_(0, seg, src)
def _pad(x, pw):
    flat = tuple(v for pair in reversed(pw) for v in pair)
    return torch.nn.functional.pad(x, flat)

kernel_name = 'standalone__mha_block_cached__near_ridge'

def setup_inputs():

    _w = (lambda a: (lambda t: t.to(torch.bfloat16) if t.is_floating_point() else t)(torch.as_tensor(a)))
    B, Sq, D = 8, 96, 512
    H, Sk, Dh = 32, 1024, 128
    return {
        "x": _w((lambda *s: torch.randn(*s, dtype=torch.bfloat16) * 0.8)(B, Sq, D)),
        "k_cache": _w((lambda *s: torch.randn(*s, dtype=torch.bfloat16) * 0.8)(B, H, Sk, Dh)),
        "v_cache": _w((lambda *s: torch.randn(*s, dtype=torch.bfloat16) * 0.05)(B, H, Sk, Dh)),
        "wq": _w((lambda *s: torch.randn(*s, dtype=torch.bfloat16) * 0.8)(D, H * Dh) * (D ** -0.5)),
        "wo": _w((lambda *s: torch.randn(*s, dtype=torch.bfloat16) * 0.05)(H * Dh, D) * ((H * Dh) ** -0.5)),
    }

def reference(x, k_cache, v_cache, wq, wo):
    B, Sq, D = x.shape
    H, Dh = 32, 128
    q = (lambda x, *d: x.permute(*d))((x @ wq).reshape(B, Sq, H, Dh), 0, 2, 1, 3)
    scores = torch.einsum("bhqd,bhkd->bhqk", q, k_cache) * (Dh ** -0.5)
    p = _softmax(scores, axis=-1)
    o = torch.einsum("bhqk,bhkd->bhqd", p, v_cache)
    return (lambda x, *d: x.permute(*d))(o, 0, 2, 1, 3).reshape(B, Sq, H * Dh) @ wo
```

```python
import re

TRANS = ("v_exp_f32", "v_log_f32", "v_rcp_f32", "v_rsq_f32", "v_sqrt_f32")

def regs_of(tok):
    tok = tok.strip()
    tok = tok.lstrip("-")
    if tok.startswith("abs(") or tok.startswith("|"):
        tok = tok.strip("|").replace("abs(", "").rstrip(")")
    m = re.fullmatch(r"([vas])\[(\d+):(\d+)\]", tok)
    if m: return {(m.group(1), i) for i in range(int(m.group(2)), int(m.group(3)) + 1)}
    m = re.fullmatch(r"([vas])(\d+)", tok)
    if m: return {(m.group(1), int(m.group(2)))}
    if tok == "vcc": return {("s", "vcc")}
    if tok == "m0": return {("s", "m0")}
    if tok == "exec": return {("s", "exec")}
    return set()

class Ins:
    def __init__(self, text):
        self.text = text
        t = text.split(";")[0].strip()
        self.label = t.endswith(":")
        self.directive = t.startswith(".")
        self.op = ""; self.rd = set(); self.wr = set(); self.kind = "none"
        self.mf = None
        if self.label or self.directive or not t: return
        parts = t.split(None, 1)
        op = self.op = parts[0]
        rest = parts[1] if len(parts) > 1 else ""
        ops = [o.strip() for o in rest.split(",")] if rest else []
        mods = ""
        if ops:
            last = ops[-1].split(None, 1)
            ops[-1] = last[0]
            mods = last[1] if len(last) > 1 else ""
        self.mods = mods
        R = [regs_of(o) for o in ops]
        if op.startswith("v_mfma"):
            self.kind = "mfma"; self.wr = R[0]; self.rd = R[1] | R[2] | R[3]
            self.mf = (R[0], R[1], R[2], R[3])
            self.passes = 8 if "32x32x16" in op else 4
        elif op.startswith("ds_read") or op.startswith("ds_bpermute"):
            self.kind = "ds"; self.wr = R[0]; self.rd = set().union(*R[1:])
        elif op.startswith("ds_"):
            self.kind = "ds"; self.rd = set().union(*R)
        elif op.startswith("buffer_load") or op.startswith("global_load"):
            self.kind = "vmem"
            if " lds" in " " + mods or "load_lds" in op:
                self.rd = set().union(*R) | {("s", "m0")}; self.dma = True
            else:
                self.wr = R[0]; self.rd = set().union(*R[1:])
        elif op.startswith("buffer_store") or op.startswith("global_store"):
            self.kind = "vmem"; self.rd = set().union(*R)
            self.store_data = (R[0] if op.startswith("buffer") else R[1]) if ("x4" in op or "x3" in op) else set()
        elif op.startswith("buffer_atomic") or op.startswith("global_atomic"):
            self.kind = "vmem"; self.rd = set().union(*R)
            if "sc0" in mods: self.wr = R[0]
        elif op.startswith("buffer_"):
            self.kind = "vmem"
        elif op.startswith("v_"):
            self.kind = "valu"
            if op.startswith("v_nop"): pass
            elif op.startswith("v_permlane") and "swap" in op:
                self.wr = R[0] | R[1]; self.rd = R[0] | R[1]
            elif op.startswith("v_cmp"):
                self.wr = R[0]; self.rd = set().union(*R[1:])
            else:
                self.wr = R[0]; self.rd = set().union(*R[1:]) if len(R) > 1 else set()
                if op.startswith("v_fmac") or op.startswith("v_writelane"): self.rd |= R[0]
                if op.startswith("v_cndmask") and len(ops) == 3: self.rd |= {("s", "vcc")}
        elif op.startswith("s_"):
            self.kind = "salu"
            if op.startswith(("s_load", "s_buffer_load", "s_memrealtime", "s_memtime")):
                self.kind = "smem"; self.wr = R[0]; self.rd = set().union(*R[1:]) if len(R) > 1 else set()
            elif op.startswith(("s_cmp", "s_bitcmp")): self.rd = set().union(*R)
            elif op.startswith(("s_waitcnt", "s_nop", "s_barrier", "s_branch", "s_cbranch", "s_endpgm", "s_sleep", "s_setprio")): pass
            else:
                self.wr = R[0] if R else set(); self.rd = set().union(*R[1:]) if len(R) > 1 else set()
                if "saveexec" in op: self.wr |= {("s", "exec")}
        else:
            raise ValueError("unknown op " + text)
    def states(self):
        if self.label or self.directive or not self.op: return 0
        if self.op == "s_nop": return int(self.text.split(";")[0].split()[1], 0) + 1
        return 1

def vonly(s): return {r for r in s if r[0] in "va"}
def sonly(s): return {r for r in s if r[0] == "s"}

def need(p, c):
    n = 0
    if p.kind == "valu":
        w = vonly(p.wr)
        if c.kind == "mfma" and w & c.rd: n = max(n, 2)
        if c.kind == "valu":
            if c.op.startswith("v_permlane") and w & c.rd: n = max(n, 2)
            if (c.op.startswith("v_readfirstlane") or c.op.startswith("v_readlane")) and w & c.rd: n = max(n, 1)
            if "dpp" in c.op and w & c.rd: n = max(n, 2)
            if p.op.split("_e")[0] in TRANS and not c.op.split("_e")[0] in TRANS and w & c.rd: n = max(n, 1)
        ws = sonly(p.wr)
        if ws:
            if c.kind == "valu" and ws & c.rd: n = max(n, 4 if c.op.startswith(("v_readlane", "v_writelane")) else 2)
            if c.kind == "vmem" and ws & c.rd: n = max(n, 5)
            if c.kind == "salu" and ws & c.rd: n = max(n, 1)
    if p.kind == "mfma":
        D, A, B, C = p.mf
        big = {8: 12, 4: 8}[p.passes]
        if c.kind == "mfma":
            D2, A2, B2, C2 = c.mf
            if D & (A2 | B2): n = max(n, big)
            if D & C2 and not (D == C2 and c.passes == p.passes): n = max(n, {8: 10, 4: 6}[p.passes])
            if D & D2 and not (D == C2 and D == D2): n = max(n, {8: 10, 4: 6}[p.passes])
        elif c.kind in ("valu", "ds", "vmem"):
            if D & (c.rd | c.wr): n = max(n, big)
            if c.kind == "valu" and C & c.wr: n = max(n, {8: 7, 4: 3}[p.passes])
    if p.kind == "salu" and ("s", "m0") in p.wr and getattr(c, "dma", False): n = max(n, 1)
    if p.kind == "vmem" and getattr(p, "store_data", None):
        if p.store_data & c.wr: n = max(n, 2 if c.kind == "valu" else 1)
    return n

class Prog:
    def __init__(self):
        self.ins = []
        self.ds_out = []
        self.nops_added = 0
        self.auto = True
    def raw(self, text):
        self.ins.append(Ins(text))
    def e(self, text):
        for line in text.split("\n"):
            line = line.strip()
            if line: self._emit(Ins(line))
    __call__ = e
    def _emit(self, i):
        if i.label or i.directive or not i.op:
            self.ins.append(i); return
        if i.op == "s_waitcnt":
            m = re.search(r"lgkmcnt\((\d+)\)", i.text)
            if m:
                n = int(m.group(1))
                self.ds_out = self.ds_out[len(self.ds_out) - n:] if n and n < len(self.ds_out) else ([] if n == 0 else self.ds_out)
        else:
            touched = i.rd | i.wr
            idx = -1
            for k, w in enumerate(self.ds_out):
                if w & touched: idx = k
            if idx >= 0:
                n = min(len(self.ds_out) - 1 - idx, 15)
                self._emit(Ins(f"s_waitcnt lgkmcnt({n})"))
        req = 0; dist = 0
        for p in reversed(self.ins):
            if dist >= 20: break
            if p.op:
                r = need(p, i) - dist
                if r > req: req = r
            dist += p.states()
        if req > 0:
            self.nops_added += req
            while req > 0:
                k = min(req, 16); self.ins.append(Ins(f"s_nop {k-1}")); req -= k
        self.ins.append(i)
        if i.kind == "ds": self.ds_out.append(set(i.wr))
        if i.kind == "smem": self.ds_out.append(set(i.wr))
    def mark(self): return len(self.ins)
    def check_trace(self, ranges, name=""):
        seq = [i for a, b in ranges for i in self.ins[a:b] if i.op]
        bad = 0
        for k, c in enumerate(seq):
            dist = 0
            for p in reversed(seq[max(0, k - 22):k]):
                if need(p, c) > dist:
                    print(f"HAZARD[{name}]: '{p.text}' -> '{c.text}' need {need(p,c)} have {dist}"); bad += 1
                dist += p.states()
        return bad
    def text(self):
        return "\n".join((i.text if (i.label or i.directive or not i.op) else "    " + i.text) for i in self.ins) + "\n"
```

```python
import sys, math, struct
sys.path.insert(0, "tools")
from asmlib import Prog

KN = "standalone__mha_block_cached__near_ridge_kernel"
HDR = open("standalone__mha_block_cached__near_ridge.s.ref").read().split("; @launch")[0]

class Cfg:
    D = 24
    qaux = "nt"; waux = ""; wfirst = ""; kvaux = "nt"
    stamps = False
    dumpq = False
    spin = 1 << 18

sK, sV, sX, sWQ, sWO, sOX, sPX, sMB, sOUT, sDBG = 20, 24, 28, 32, 36, 40, 44, 48, 52, 56
sB, sH, sG, sJ, sWOFF = 60, 61, 62, 63, 64
sT0, sT1, sT2 = 65, 66, 67
sI, sKOFF, sVOFF, sTHK, sTHV, sC, sSPIN, sFL = 68, 69, 70, 71, 72, 73, 74, 75
sT3, sT4 = 76, 77
vO, vS, vP, vQ = 64, 128, 160, 176
vKAB, vKAC, vVAB, vVAC, vWOA, vWQA = 208, 216, 224, 228, 232, 234
vM, vL, vAL, vMC, vT0, vT1, vFLAG, vFLA, vDNA, vDNV = 240, 241, 242, 243, 244, 245, 246, 247, 248, 249
vL16 = 250
dK, dX, dWQ, dWO = 10, 12, 14, 16
lK, lV, lWO = 18, 22, 24
vJUNK = 32
aK, aV, aWO = 0, 64, 128
L_K, L_V, L_E, L_M = 0, 65536, 131072, 155648
L_LANDED, L_DONE = L_M, L_M + 256
W_OX, W_PX, W_MB = 0, 8 << 20, 32 << 20
W_DUMP = 64 << 20

def srd(n): return f"s[{n}:{n+3}]"
def vr(n, k): return f"v[{n}:{n+k-1}]"
def ar(n, k): return f"a[{n}:{n+k-1}]"

def gen(cfg):
    p = Prog(); e = p.e
    uid = [0]
    def lab(s): uid[0] += 1; return f"L_{s}_{uid[0]}"
    nst = [0]
    def stamp(k):
        if cfg.stamps:
            e(f"s_memrealtime s[{80+2*k}:{81+2*k}]"); e("s_waitcnt lgkmcnt(0)")
    for l in HDR.strip("\n").split("\n"): p.raw(l)
    p.raw("; @launch grid=(256,1,1) block=(256,1,1) lds=163840")
    p.raw('.amdgcn_target "amdgcn-amd-amdhsa--gfx950"'); p.raw(".text"); p.raw(f".globl {KN}"); p.raw(".p2align 8"); p.raw(f".type {KN},@function")
    e(f"{KN}:")
    e("s_cmp_ge_u32 s2, 256"); e("s_cbranch_scc1 L_end")
    e("s_load_dwordx16 s[4:19], s[0:1], 0")
    if cfg.stamps: e("s_memrealtime s[80:81]")
    e("v_lshrrev_b32 v1, 6, v0"); e("v_and_b32 v0, 63, v0")
    e("v_readfirstlane_b32 s3, v1")
    e(f"s_lshr_b32 s{sB}, s2, 5"); e(f"s_and_b32 s{sH}, s2, 31"); e(f"s_and_b32 s{sG}, s2, 7"); e(f"s_lshr_b32 s{sJ}, s{sH}, 3")
    e(f"s_lshl_b32 s{sWOFF}, s3, 11")
    e("v_lshrrev_b32 v2, 4, v0")
    e("v_and_b32 v3, 15, v0")
    e("v_lshlrev_b32 v4, 2, v2"); e("v_xor_b32 v4, v4, v3"); e("v_lshlrev_b32 v5, 4, v4")
    e(f"s_lshl_b32 s{sT0}, s3, 3")
    for i in range(2):
        e(f"v_add_u32 v4, s{sT0}, v2")
        if i: e("v_add_u32 v4, 4, v4")
        e("v_and_b32 v6, 15, v4"); e("v_xor_b32 v6, v6, v3"); e("v_lshlrev_b32 v6, 4, v6")
        if i: e("v_subrev_u32 v6, 0x400, v6")
        e(f"v_lshl_add_u32 v{dK+i}, v4, 8, v6")
        e(f"v_lshl_add_u32 v{dX+i}, v4, 10, v6")
        if i: e("v_subrev_u32 v6, 0x400, v5")
        else: e("v_mov_b32 v6, v5")
        e(f"v_lshl_add_u32 v{dWQ+i}, v4, 13, v6")
        e(f"v_lshl_add_u32 v{dWO+i}, v4, 10, v6")
    e("s_waitcnt lgkmcnt(0)")
    def mksrd(n, base, off_reg, size):
        if off_reg is None:
            e(f"s_mov_b32 s{n}, s{base}"); e(f"s_mov_b32 s{n+1}, s{base+1}")
        else:
            e(f"s_add_u32 s{n}, s{base}, {off_reg}"); e(f"s_addc_u32 s{n+1}, s{base+1}, 0")
        e(size if size.startswith("s_") else f"s_mov_b32 s{n+2}, {size}")
        e(f"s_mov_b32 s{n+3}, 0x20000")
    e(f"s_mul_i32 s{sT0}, s{sB}, 98304"); mksrd(sX, 4, f"s{sT0}", "98304")
    e(f"s_lshl_b32 s{sT0}, s{sH}, 8"); mksrd(sWQ, 10, f"s{sT0}", f"s_sub_u32 s{sWQ+2}, 0x400000, s{sT0}")
    vq = []
    def vm(tag, text): e(text); vq.append(tag)
    def vwait(tag, q=vq):
        idx = max(k for k, t in enumerate(q) if t == tag)
        n = len(q) - 1 - idx
        assert n <= 63
        e(f"s_waitcnt vmcnt({n})")
    jn = [0]
    def junk(): jn[0] = (jn[0] + 1) % 8; return vr(vJUNK + 4 * jn[0], 4)
    e(f"s_lshl_b32 s{sT1}, s{sJ}, 8")
    for i in range(3):
        if i: e(f"s_add_u32 s{sT1}, s{sT1}, 32768")
        vm("P", f"buffer_load_dwordx4 {junk()}, v{dX}, {srd(sX)}, s{sT1} offen {cfg.qaux}")
        vm("P", f"buffer_load_dwordx4 {junk()}, v{dX+1}, {srd(sX)}, s{sT1} offen offset:1024 {cfg.qaux}")
    e(f"s_lshl_b32 s{sT1}, s{sB}, 19")
    for i in range(2):
        if i: e(f"s_add_u32 s{sT1}, s{sT1}, 0x40000")
        vm("P", f"buffer_load_dwordx4 {junk()}, v{dWQ}, {srd(sWQ)}, s{sT1} offen {cfg.qaux}")
        vm("P", f"buffer_load_dwordx4 {junk()}, v{dWQ+1}, {srd(sWQ)}, s{sT1} offen offset:1024 {cfg.qaux}")
    e(f"s_lshl_b32 s{sT0}, s2, 18"); mksrd(sK, 6, f"s{sT0}", "0x40000"); mksrd(sV, 8, f"s{sT0}", "0x40000")
    e(f"s_lshl_b32 s{sT0}, s{sG}, 17"); e(f"s_lshl_b32 s{sT1}, s{sJ}, 8"); e(f"s_add_u32 s{sT0}, s{sT0}, s{sT1}")
    mksrd(sWO, 12, f"s{sT0}", f"s_sub_u32 s{sWO+2}, 0x400000, s{sT0}")
    def head_dma(tag, lds, voff, sr, soff, aux):
        e(f"s_add_u32 m0, s{sWOFF}, {lds}")
        if isinstance(soff, int): e(f"s_mov_b32 s{sT1}, {soff}"); soff = f"s{sT1}"
        vm(tag, f"buffer_load_dwordx4 v{voff}, {srd(sr)}, {soff} offen {aux} lds")
        vm(tag, f"buffer_load_dwordx4 v{voff+1}, {srd(sr)}, {soff} offen offset:1024 {aux} lds")
    for t in range(4): head_dma("K", L_K + t * 8192, dK, sK, t * 8192, cfg.kvaux)
    e(f"s_lshr_b32 s{sT0}, s{sB}, 1"); e(f"s_lshl_b32 s{sT0}, s{sT0}, 20"); e(f"s_and_b32 s{sT1}, s{sB}, 1"); e(f"s_lshl_b32 s{sT1}, s{sT1}, 16"); e(f"s_add_u32 s{sT1}, s{sT1}, s{sT0}")
    for i in range(2):
        if i: e(f"s_add_u32 s{sT1}, s{sT1}, 32768")
        vm("P", f"buffer_load_dwordx4 {junk()}, v{dWO}, {srd(sWO)}, s{sT1} offen {cfg.wfirst}")
        vm("P", f"buffer_load_dwordx4 {junk()}, v{dWO+1}, {srd(sWO)}, s{sT1} offen offset:1024 {cfg.wfirst}")
    QBUF = [(L_V, L_K + 32768), (L_V + 32768, L_E)]
    def issue_chunk(c):
        wqb, xb = QBUF[c & 1]
        for i in range(3): head_dma(f"C{c}", xb + i * 8192, dX, sX, c * 256 + i * 32768, cfg.qaux)
        for t in range(4): head_dma(f"C{c}", wqb + t * 8192, dWQ, sWQ, (4 * c + t) * 0x40000, cfg.qaux)
    issue_chunk(0); issue_chunk(1)
    mksrd(sOX, 18, None, hex(256 * 24576))
    e(f"s_mov_b32 s{sT0}, {W_PX}"); mksrd(sPX, 18, f"s{sT0}", hex(256 * 8 * 3 * 1024))
    e(f"s_mov_b32 s{sT0}, {W_MB}"); mksrd(sMB, 18, f"s{sT0}", hex(256 * 128))
    mksrd(sOUT, 14, None, hex(8 * 96 * 512 * 2))
    mksrd(sDBG, 16, None, "256")
    c = (128 ** -0.5) * math.log2(math.e)
    e(f"s_mov_b32 s{sC}, {hex(struct.unpack('<I', struct.pack('<f', c))[0])}")
    e(f"v_lshlrev_b32 v{vL16}, 4, v0")
    e("v_and_b32 v4, 31, v0"); e("v_lshrrev_b32 v6, 5, v0")
    for s in range(8):
        e(f"v_add_u32 v7, {2*s}, v6"); e("v_xor_b32 v7, v7, v3"); e("v_lshlrev_b32 v7, 4, v7")
        e(f"v_lshl_add_u32 v{vKAB+s}, v4, 8, v7")
    e("v_bfe_u32 v4, v0, 2, 2")
    e("v_bfe_u32 v7, v0, 4, 1")
    e("v_and_b32 v8, 3, v0")
    e("v_lshlrev_b32 v7, 5, v7")
    e("v_lshl_add_u32 v9, v8, 3, v7")
    e("v_and_b32 v1, 1, v0"); e("v_lshl_add_u32 v7, v1, 4, v7"); e("v_bfe_u32 v1, v0, 1, 1"); e("v_lshl_add_u32 v7, v1, 3, v7")
    e("v_lshl_add_u32 v8, v6, 2, v4"); e("v_lshlrev_b32 v8, 8, v8")
    e("v_lshl_add_u32 v1, v6, 3, v4"); e("v_lshlrev_b32 v1, 8, v1")
    e(f"v_add_u32 v9, v9, v8"); e(f"v_add_u32 v9, {L_V}, v9")
    e(f"v_add_u32 v1, v1, v7"); e(f"v_add_u32 v1, {L_V}, v1")
    for d in range(4):
        e(f"v_xor_b32 v2, {d}, v4")
        e(f"v_lshl_add_u32 v{vVAB+d}, v2, 6, v9")
        e(f"v_lshl_add_u32 v{vWQA+d}, v2, 6, v1")
    e("v_xor_b32 v2, s3, v4"); e("v_add_u32 v8, v8, v7"); e(f"v_lshl_add_u32 v{vWOA}, v2, 6, v8"); e(f"v_add_u32 v{vWOA}, {L_E}, v{vWOA}")
    e(f"v_mov_b32 v{vFLA}, {L_LANDED}")
    e(f"s_lshl_b32 s{sT0}, s3, 8"); e(f"s_add_u32 s{sT0}, s{sT0}, {L_DONE}")
    e(f"v_lshl_add_u32 v{vDNA}, v0, 2, s{sT0}")
    e(f"v_mov_b32 v{vDNV}, 0")
    e(f"ds_write_b32 v{vDNA}, v{vDNV}")
    e("s_cmp_eq_u32 s3, 3"); e("s_cbranch_scc1 L_loader")

    cq = list(vq)
    l0 = lab("nomb")
    e("s_cmp_eq_u32 s3, 0"); e(f"s_cbranch_scc0 {l0}")
    e(f"s_lshl_b32 s{sT0}, s2, 7"); e("v_lshlrev_b32 v2, 2, v0"); e("s_mov_b64 exec, 0xffff")
    e(f"buffer_store_dword v{vDNV}, v2, {srd(sMB)}, s{sT0} offen sc1")
    e("s_mov_b64 exec, -1")
    e(f"{l0}:")
    def qchunk(c, q):
        wqb, xb = QBUF[c & 1]
        idx = max(k for k, t in enumerate(q) if t == f"C{c}"); n = len(q) - 1 - idx
        e(f"s_waitcnt vmcnt({n}) lgkmcnt(0)")
        e("s_barrier")
        e(f"s_lshl_b32 s{sT0}, s3, 13"); e(f"s_add_u32 s{sT0}, s{sT0}, {xb}")
        for s in range(8): e(f"v_add_u32 v{vKAC+s}, s{sT0}, v{vKAB+s}")
        def reads(s):
            r = [f"ds_read_b128 {vr(vS+4*s,4)}, v{vKAC+s}"]
            off = (wqb - L_V) + (s >> 1) * 8192 + (s & 1) * 4096
            for d in range(4):
                a = (s * 4 + d) * 4
                r.append(f"ds_read_b64_tr_b16 {ar(a,2)}, v{vWQA+d} offset:{off}")
                r.append(f"ds_read_b64_tr_b16 {ar(a+2,2)}, v{vWQA+d} offset:{off+1024}")
            return r
        pend = [r for s in range(8) for r in reads(s)]
        for r in pend[:12]: e(r)
        pend = pend[12:]
        released = False
        for s in range(8):
            for d in range(4):
                cc = "0" if (c == 0 and s == 0) else vr(vO + 16 * d, 16)
                e(f"v_mfma_f32_32x32x16_bf16 {vr(vO+16*d,16)}, {ar((s*4+d)*4,4)}, {vr(vS+4*s,4)}, {cc}")
                for r in pend[:4]: e(r)
                pend = pend[4:]
            if not pend and not released and s >= 4:
                released = True
                e("s_waitcnt lgkmcnt(0)"); e("s_barrier")
                if c < 2:
                    n0 = len(vq); issue_chunk(c + 2); q.extend(vq[n0:])
        assert released
    for c in range(4): qchunk(c, cq)
    stamp(1)
    l0 = lab("noci")
    e("s_cmp_eq_u32 s3, 0"); e(f"s_cbranch_scc0 {l0}")
    e(f"s_lshl_b32 s{sT0}, s{sB}, 5"); e("v_mov_b32 v2, 1"); e("v_mov_b32 v3, 0"); e("s_mov_b64 exec, 1")
    e(f"buffer_atomic_add v2, v3, {srd(sDBG)}, s{sT0} offen sc1")
    e("s_mov_b64 exec, -1")
    e(f"{l0}:")
    for k in range(32): e(f"v_cvt_pk_bf16_f32 v{vQ+k}, v{vO+2*k}, v{vO+2*k+1}")
    if cfg.dumpq:
        e(f"s_mul_i32 s{sT0}, s2, 24576"); e(f"s_lshl_b32 s{sT1}, s3, 13"); e(f"s_add_u32 s{sT0}, s{sT0}, s{sT1}")
        e(f"s_add_u32 s{sT0}, s{sT0}, {W_DUMP}"); e(f"s_add_u32 s{sT2+9}, s18, s{sT0}"); e(f"s_addc_u32 s{sT2+10}, s19, 0")
        for s in range(8):
            e(f"v_add_u32 v2, {s*1024}, v{vL16}")
            e(f"global_store_dwordx4 v2, {vr(vQ+4*s,4)}, s[{sT2+9}:{sT2+10}]")
    e(f"v_mov_b32 v{vM}, 0xff800000"); e(f"v_mov_b32 v{vL}, 0")
    e(f"s_mov_b32 s{sI}, 0"); e(f"s_mov_b32 s{sKOFF}, 0"); e(f"s_mov_b32 s{sVOFF}, 0"); e(f"s_mov_b32 s{sTHK}, 0"); e(f"s_mov_b32 s{sTHV}, 3")

    slow = []
    def flag_prefetch(): return f"ds_read_b32 v{vFLAG}, v{vFLA}"
    def flag_check(sth):
        ls, lb = lab("slow"), lab("back")
        e(f"v_readfirstlane_b32 s{sFL}, v{vFLAG}")
        e(f"s_cmp_ge_u32 s{sFL}, s{sth}"); e(f"s_cbranch_scc0 {ls}")
        e(f"{lb}:")
        slow.append((ls, lb, sth))
    def exp_ops(r):
        return [f"v_fma_f32 v{r}, v{r}, s{sC}, -v{vMC}", f"v_exp_f32 v{r}, v{r}"], f"v_add_f32 v{vL}, v{vL}, v{r}"
    def exp_list(regs):
        out = []; pend = None
        for r in regs:
            a, b = exp_ops(r); out += a
            if pend: out.append(pend)
            pend = b
        out.append("s_nop 0"); out.append(pend)
        return out
    def cost(t): return 2 if t.startswith("v_exp") else 1
    def merge(mf, ds, va, per_ds, gates={}):
        tot = sum(cost(t) for t in va); done = 0; vi = 0
        for k, m in enumerate(mf):
            while vi < gates.get(k, 0): e(va[vi]); done += cost(va[vi]); vi += 1
            e(m)
            for r in ds[:per_ds]: e(r)
            ds = ds[per_ds:]
            while vi < len(va) and done < tot * (k + 1) / len(mf): e(va[vi]); done += cost(va[vi]); vi += 1
        for r in ds: e(r)
        while vi < len(va): e(va[vi]); vi += 1
    NB = 8
    def blockA(qk=True, valu=True):
        cv0 = [f"v_cvt_pk_bf16_f32 v{vP+k}, v{vS+2*k}, v{vS+2*k+1}" for k in range(8)]
        cv1 = [f"v_cvt_pk_bf16_f32 v{vP+k}, v{vS+2*k}, v{vS+2*k+1}" for k in range(8, 16)]
        v1 = exp_list(range(vS + 16 + NB, vS + 32)) + cv1
        v2 = [f"v_mul_f32 v{vO+k}, v{vAL}, v{vO+k}" for k in range(64)]
        vadr = [f"v_add_u32 v{vVAC+d}, s{sVOFF}, v{vVAB+d}" for d in range(4)]
        if not qk:
            for t in cv0 + v1 + [flag_prefetch()] + v2 + vadr: e(t)
            return
        flag_check(sTHK)
        for s in range(8): e(f"v_add_u32 v{vKAC+s}, s{sKOFF}, v{vKAB+s}")
        rd = [f"ds_read_b128 {ar(aK+(t*8+s)*4,4)}, v{vKAC+s} offset:{t*8192}" for t in range(2) for s in range(8)]
        for r in rd[:6]: e(r)
        mf = [f"v_mfma_f32_32x32x16_bf16 {vr(vS+16*t,16)}, {ar(aK+(t*8+s)*4,4)}, {vr(vQ+4*s,4)}, {'0' if s==0 else vr(vS+16*t,16)}" for t in range(2) for s in range(8)]
        e(f"s_add_u32 s{sKOFF}, s{sKOFF}, 16384"); e(f"s_and_b32 s{sKOFF}, s{sKOFF}, 0xffff"); e(f"s_add_u32 s{sTHK}, s{sTHK}, 5")
        if valu:
            for t in cv0: e(t)
            merge(mf, rd[6:] + [flag_prefetch()], v1 + v2 + vadr, 1, {8: len(v1)})
        else:
            merge(mf, rd[6:] + [flag_prefetch()], [], 1)
    def softmax_head():
        va = []
        va.append(f"v_max3_f32 v{vT0}, v{vS}, v{vS+1}, v{vM}")
        for k in range(2, 32, 2): va.append(f"v_max3_f32 v{vT0}, v{vS+k}, v{vS+k+1}, v{vT0}")
        va += [f"v_mov_b32 v{vT1}, v{vT0}", "s_nop 1", f"v_permlane32_swap_b32 v{vT0}, v{vT1}", f"v_max_f32 v{vT0}, v{vT0}, v{vT1}",
               f"v_sub_f32 v{vT1}, v{vM}, v{vT0}", f"v_mul_f32 v{vMC}, s{sC}, v{vT0}", f"v_mul_f32 v{vT1}, s{sC}, v{vT1}", f"v_exp_f32 v{vAL}, v{vT1}",
               f"v_mov_b32 v{vM}, v{vT0}", f"v_mul_f32 v{vL}, v{vAL}, v{vL}"]
        va += exp_list(range(vS, vS + 16 + NB))
        return va
    def wo_reads(t):
        off = (t % 3) * 8192
        return [f"ds_read_b64_tr_b16 {ar(aWO+8*t+4*u+2*h,2)}, v{vWOA} offset:{off+u*4096+h*2048}" for u in range(2) for h in range(2)]
    snippets = []
    def blockB(pv=True, valu=True, last=False):
        if not pv:
            for t in softmax_head(): e(t)
            return
        flag_check(sTHV)
        rd = []
        for u in range(4):
            for d in range(4):
                a = aV + (u * 4 + d) * 4
                rd.append(f"ds_read_b64_tr_b16 {ar(a,2)}, v{vVAC+d} offset:{u*4096}")
                rd.append(f"ds_read_b64_tr_b16 {ar(a+2,2)}, v{vVAC+d} offset:{u*4096+2048}")
        if last:
            for r in wo_reads(15): e(r)
        else:
            lret = lab("woret")
            def tree(lo, hi):
                if hi - lo == 1:
                    nm = f"L_wo{lo}"; snippets.append((nm, lo, lret)); e(f"s_branch {nm}"); return
                mid = (lo + hi) // 2; lr = lab("t")
                e(f"s_cmp_ge_u32 s{sI}, {mid}"); e(f"s_cbranch_scc1 {lr}")
                tree(lo, mid); e(f"{lr}:"); tree(mid, hi)
            tree(0, 15)
            e(f"{lret}:")
            p.ds_out += [set(), set(), set(), set()]
        for r in rd[:10]: e(r)
        mf = [f"v_mfma_f32_32x32x16_bf16 {vr(vO+16*d,16)}, {ar(aV+(u*4+d)*4,4)}, {vr(vP+4*u,4)}, {vr(vO+16*d,16)}" for u in range(4) for d in range(4)]
        if last:
            merge(mf, rd[10:], [], 2); return
        e(f"s_add_u32 s{sVOFF}, s{sVOFF}, 16384"); e(f"s_and_b32 s{sVOFF}, s{sVOFF}, 0xffff"); e(f"s_add_u32 s{sTHV}, s{sTHV}, 5")
        e(f"s_add_u32 s{sI}, s{sI}, 1")
        va = softmax_head()
        for t in va[:8]: e(t)
        e(f"v_mov_b32 v{vDNV}, s{sI}")
        merge(mf, rd[10:] + [flag_prefetch()], va[8:], 2)
        e("s_waitcnt lgkmcnt(0)")
        e(f"ds_write_b32 v{vDNA}, v{vDNV}")
    e(flag_prefetch())
    m0_ = p.mark()
    blockA(valu=False)
    e(f"s_mov_b32 s{sTHK}, 0")
    blockB(pv=False)
    e("s_waitcnt lgkmcnt(0)")
    m1 = p.mark()
    e("L_loop:")
    blockA(); blockB()
    e(f"s_cmp_lt_u32 s{sI}, 15"); e("s_cbranch_scc1 L_loop")
    m2 = p.mark()
    e(f"s_lshl_b32 s{sT0}, s{sB}, 5"); e("v_mov_b32 v3, 0")
    e(f"buffer_load_dword v2, v3, {srd(sDBG)}, s{sT0} offen sc1")
    blockA(qk=False)
    lci, lcb = lab("ci"), lab("cib")
    e("s_waitcnt vmcnt(0)"); e(f"v_readfirstlane_b32 s{sFL}, v2"); e(f"s_cmp_ge_u32 s{sFL}, 32"); e(f"s_cbranch_scc0 {lci}"); e(f"{lcb}:")
    blockB(last=True)
    stamp(2)
    e(f"v_mov_b32 v{vT1}, v{vL}"); e(f"v_permlane32_swap_b32 v{vL}, v{vT1}"); e(f"v_add_f32 v{vL}, v{vL}, v{vT1}"); e(f"v_rcp_f32 v{vL}, v{vL}")
    e(f"s_mul_i32 s{sT0}, s2, 24576"); e(f"s_lshl_b32 s{sT1}, s3, 13"); e(f"s_add_u32 s{sT0}, s{sT0}, s{sT1}")
    e(f"v_add_u32 v2, s{sT1}, v{vL16}")
    for s in range(8):
        for k in range(8): e(f"v_mul_f32 v{vO+8*s+k}, v{vL}, v{vO+8*s+k}")
        for k in range(4): e(f"v_cvt_pk_bf16_f32 v{vS+4*s+k}, v{vO+8*s+2*k}, v{vO+8*s+2*k+1}")
        if s == 4: e(f"s_add_u32 s{sT0}, s{sT0}, 4096")
        e(f"buffer_store_dwordx4 {vr(vS+4*s,4)}, v{vL16}, {srd(sOX)}, s{sT0} offen offset:{(s&3)*1024} sc1")
        e(f"ds_write_b128 v2, {vr(vS+4*s,4)} offset:{s*1024}")
    e("s_waitcnt vmcnt(0) lgkmcnt(0)")
    m3 = p.mark()
    e("s_branch L_tail")
    for ls, lb, sth in slow:
        l2 = lab("sp")
        e(f"{ls}:"); e(f"s_mov_b32 s{sSPIN}, {cfg.spin}")
        e(f"{l2}:"); e(f"ds_read_b32 v{vFLAG}, v{vFLA}"); e("s_waitcnt lgkmcnt(0)"); e(f"v_readfirstlane_b32 s{sFL}, v{vFLAG}")
        e(f"s_cmp_ge_u32 s{sFL}, s{sth}"); e(f"s_cbranch_scc1 {lb}")
        e(f"s_sub_u32 s{sSPIN}, s{sSPIN}, 1"); e(f"s_cmp_eq_u32 s{sSPIN}, 0"); e(f"s_cbranch_scc0 {l2}"); e(f"s_branch {lb}")
    for nm, t, ret in snippets:
        e(f"{nm}:")
        for r in wo_reads(t): p.raw(r)
        e(f"s_branch {ret}")
    l2 = lab("sp")
    e(f"{lci}:"); e(f"s_mov_b32 s{sSPIN}, {cfg.spin}")
    e(f"{l2}:"); e(f"buffer_load_dword v2, v3, {srd(sDBG)}, s{sT0} offen sc1"); e("s_waitcnt vmcnt(0)"); e(f"v_readfirstlane_b32 s{sFL}, v2")
    e(f"s_cmp_ge_u32 s{sFL}, 32"); e(f"s_cbranch_scc1 {lcb}"); e("s_sleep 4")
    e(f"s_sub_u32 s{sSPIN}, s{sSPIN}, 1"); e(f"s_cmp_eq_u32 s{sSPIN}, 0"); e(f"s_cbranch_scc0 {l2}"); e(f"s_branch {lcb}")

    e("L_loader:")
    p.ds_out = []
    lq = list(vq[:len(vq) - 28])
    assert lq[-1] == "C1"
    e("v_lshrrev_b32 v2, 4, v0"); e("v_and_b32 v3, 15, v0")
    for j in range(4):
        e(f"v_add_u32 v4, {4*j}, v2"); e("v_xor_b32 v4, v4, v3"); e("v_lshlrev_b32 v4, 4, v4"); e(f"v_lshl_add_u32 v{lK+j}, v2, 8, v4")
        e(f"v_add_u32 v4, {3*j}, v2"); e(f"v_lshl_add_u32 v{lWO+j}, v4, 10, v5")
    e(f"v_lshl_add_u32 v{lV}, v2, 8, v5")
    e(f"v_lshlrev_b32 v6, 2, v0"); e(f"v_add_u32 v6, {L_LANDED}, v6")
    e(f"ds_write_b32 v6, v{vDNV}")
    e("v_and_b32 v7, 3, v0"); e("v_lshlrev_b32 v7, 8, v7"); e(f"v_add_u32 v7, {L_DONE}, v7")
    def lwait(tag):
        idx = max(k for k, t in enumerate(lq) if t == tag); n = len(lq) - 1 - idx
        assert n <= 63
        e(f"s_waitcnt vmcnt({n}) lgkmcnt(0)")
    for c in range(2):
        lwait(f"C{c}"); e("s_barrier"); e("s_barrier")
        n0 = len(vq); issue_chunk(c + 2); lq.extend(vq[n0:])
    lwait("C2"); e("s_barrier"); e("s_barrier")
    tiles = []
    state = {"pub": 0}
    def after_wait(n_out):
        comp = lq[:len(lq) - n_out] if n_out else lq
        while state["pub"] < len(tiles) and comp.count(tiles[state["pub"]][0]) == 8:
            nm, val, wo = tiles[state["pub"]]; state["pub"] += 1
            if val is not None:
                e(f"v_mov_b32 v8, {val}"); e("ds_write_b32 v6, v8")
            if wo is not None:
                for r in wo_reads(wo): e(r)
    def ltile(kind, idx, lds, val, window=True):
        nm = f"{kind}{idx}"; tiles.append((nm, val, idx if kind == "wo" else None))
        if kind == "wo":
            e(f"s_add_u32 s{sT1}, s{sJ}, {idx>>2}"); e(f"s_and_b32 s{sT1}, s{sT1}, 3"); e(f"s_lshl_b32 s{sT1}, s{sT1}, 20")
            if idx & 3: e(f"s_add_u32 s{sT1}, s{sT1}, {(idx&3)*32768}")
        for half in range(2):
            e(f"s_mov_b32 m0, {lds + half*4096}")
            if kind == "wo":
                if half: e(f"s_add_u32 s{sT1}, s{sT1}, 16384")
            else: e(f"s_mov_b32 s{sT1}, {idx*8192 + half*4096}")
            for j in range(4):
                if window and j % 2 == 0:
                    e(f"s_waitcnt vmcnt({cfg.D-2})"); after_wait(cfg.D - 2)
                a, sr, aux = {"K": (lK + j, sK, cfg.kvaux), "V": (lV, sV, cfg.kvaux), "wo": (lWO + j, sWO, cfg.waux)}[kind]
                e(f"buffer_load_dwordx4 v{a}, {srd(sr)}, s{sT1} offen offset:{j*1024} {aux} lds"); lq.append(nm)
    lslow = []
    for i in range(16):
        if i >= 3:
            ls, lb = lab("lslow"), lab("lback")
            e("s_waitcnt lgkmcnt(0)")
            e(f"v_readlane_b32 s{sT2}, v9, 0"); e(f"v_readlane_b32 s{sT3}, v9, 1"); e(f"v_readlane_b32 s{sT4}, v9, 2")
            e(f"s_min_u32 s{sT2}, s{sT2}, s{sT3}"); e(f"s_min_u32 s{sT2}, s{sT2}, s{sT4}")
            e(f"s_cmp_ge_u32 s{sT2}, {i-2}"); e(f"s_cbranch_scc0 {ls}"); e(f"{lb}:")
            lslow.append((ls, lb, i - 2))
        vb = L_V + (i & 3) * 16384; kb = L_K + ((i + 2) & 3) * 16384
        if i == 0:
            ltile("V", 0, vb, None, window=False); ltile("V", 1, vb + 8192, None, window=False)
            lwait("C3"); e("s_barrier")
            ltile("K", 4, kb, None); ltile("K", 5, kb + 8192, None)
            e("s_barrier")
            ltile("wo", 0, L_E, 5)
        else:
            ltile("wo", i, L_E + (i % 3) * 8192, None)
            ltile("V", 2 * i, vb, None)
            if i >= 2 and i < 15 and i >= 14: e("ds_read_b32 v9, v7")
            ltile("V", 2 * i + 1, vb + 8192, 5 * i + 3 if i < 14 else 5 * i + 5)
            if i < 14:
                ltile("K", 2 * i + 4, kb, None)
                if i >= 2: e("ds_read_b32 v9, v7")
                ltile("K", 2 * i + 5, kb + 8192, 5 * i + 5)
    for n in (16, 8, 0):
        if n < cfg.D: e(f"s_waitcnt vmcnt({n})"); after_wait(n)
    assert state["pub"] == len(tiles)
    stamp(3)
    e("s_waitcnt vmcnt(0) lgkmcnt(0)")
    e("s_branch L_tail")
    for ls, lb, th in lslow:
        l2 = lab("sp")
        e(f"{ls}:"); e(f"s_mov_b32 s{sSPIN}, {cfg.spin}")
        e(f"{l2}:"); e("ds_read_b32 v9, v7"); e("s_waitcnt lgkmcnt(0)")
        e(f"v_readlane_b32 s{sT2}, v9, 0"); e(f"v_readlane_b32 s{sT3}, v9, 1"); e(f"v_readlane_b32 s{sT4}, v9, 2")
        e(f"s_min_u32 s{sT2}, s{sT2}, s{sT3}"); e(f"s_min_u32 s{sT2}, s{sT2}, s{sT4}")
        e(f"s_cmp_ge_u32 s{sT2}, {th}"); e(f"s_cbranch_scc1 {lb}")
        e(f"s_sub_u32 s{sSPIN}, s{sSPIN}, 1"); e(f"s_cmp_eq_u32 s{sSPIN}, 0"); e(f"s_cbranch_scc0 {l2}"); e(f"s_branch {lb}")

    m4 = p.mark()
    e("L_tail:")
    p.ds_out = []
    e("s_barrier")
    stamp(4)
    e(f"s_lshl_b32 s{sT0}, s{sB}, 5"); e(f"s_add_u32 s{sT0}, s{sT0}, s{sG}")
    e("v_mov_b32 v4, 1")
    l0 = lab("nofl")
    e("s_cmp_eq_u32 s3, 3"); e(f"s_cbranch_scc0 {l0}")
    e(f"s_lshl_b32 s{sT1}, s{sT0}, 7"); e(f"s_lshl_b32 s{sT2}, s{sJ}, 2"); e(f"s_add_u32 s{sT1}, s{sT1}, s{sT2}")
    e("v_lshlrev_b32 v2, 10, v0"); e("s_mov_b64 exec, 0xf")
    e(f"buffer_store_dword v4, v2, {srd(sMB)}, s{sT1} offen sc1")
    e("s_mov_b64 exec, -1")
    e(f"{l0}:")
    e(f"s_lshl_b32 s{sT1}, s2, 7"); e("v_mov_b32 v3, 0"); e(f"s_mov_b32 s{sSPIN}, {cfg.spin}")
    l1, l2 = lab("p1"), lab("p1d")
    e(f"{l1}:"); e(f"buffer_load_dwordx4 v[8:11], v3, {srd(sMB)}, s{sT1} offen sc1"); e("s_waitcnt vmcnt(0)")
    e("v_and_b32 v8, v8, v9"); e("v_and_b32 v10, v10, v11"); e("v_and_b32 v8, v8, v10"); e(f"v_readfirstlane_b32 s{sFL}, v8")
    e(f"s_cmp_eq_u32 s{sFL}, 1"); e(f"s_cbranch_scc1 {l2}")
    e(f"s_sub_u32 s{sSPIN}, s{sSPIN}, 1"); e(f"s_cmp_eq_u32 s{sSPIN}, 0"); e(f"s_cbranch_scc0 {l1}")
    e(f"{l2}:")
    stamp(5)
    e(f"s_mul_i32 s{sT3}, s3, 6144")
    for pp in range(1, 4):
        e(f"s_add_u32 s{sT1}, s{sJ}, {pp}"); e(f"s_and_b32 s{sT1}, s{sT1}, 3"); e(f"s_lshl_b32 s{sT1}, s{sT1}, 3"); e(f"s_add_u32 s{sT1}, s{sT1}, s{sT0}")
        e(f"s_mul_i32 s{sT1}, s{sT1}, 24576"); e(f"s_add_u32 s{sT1}, s{sT1}, s{sT3}")
        e(f"s_add_u32 m0, s{sT3}, {pp*24576}")
        for k in range(6):
            if k == 4: e(f"s_add_u32 m0, m0, 4096"); e(f"s_add_u32 s{sT1}, s{sT1}, 4096")
            e(f"buffer_load_dwordx4 v{vL16}, {srd(sOX)}, s{sT1} offen offset:{(k&3)*1024} sc1 lds")
    e(f"v_add_u32 v5, 49152, v{vL16}")
    for pp in range(4):
        if pp: e(f"s_waitcnt vmcnt({6*(3-pp)})"); e("s_barrier")
        rd = []; mf = []
        for s in range(8):
            for i in range(3):
                fr = (pp * 24 + s * 3 + i) % 32
                off = (pp * 24 + i * 8 + s) * 1024
                ad = f"v{vL16}" if off < 49152 else "v5"
                rd.append(f"ds_read_b128 {ar(fr*4,4)}, {ad} offset:{off if off < 49152 else off-49152}")
                cc = "0" if (pp == 0 and s == 0) else vr(vO + 16 * i, 16)
                mf.append(f"v_mfma_f32_32x32x16_bf16 {vr(vO+16*i,16)}, {ar(aWO+4*(pp*8+s),4)}, {ar(fr*4,4)}, {cc}")
        for r in rd[:6]: e(r)
        merge(mf, rd[6:], [], 1)
    stamp(6)
    e(f"s_lshl_b32 s{sT0}, s{sB}, 5"); e(f"s_lshl_b32 s{sT1}, s{sJ}, 3"); e(f"s_add_u32 s{sT0}, s{sT0}, s{sT1}"); e(f"s_lshl_b32 s{sT1}, s3, 1"); e(f"s_add_u32 s{sT0}, s{sT0}, s{sT1}")
    e(f"s_mul_i32 s{sT1}, s{sT0}, 24576"); e(f"s_mul_i32 s{sT2}, s{sG}, 3072"); e(f"s_add_u32 s{sT1}, s{sT1}, s{sT2}")
    for u in range(6):
        for k in range(4): e(f"v_cvt_pk_bf16_f32 v{vS+4*u+k}, v{vO+8*u+2*k}, v{vO+8*u+2*k+1}")
        if u == 3: e(f"s_add_u32 s{sT1}, s{sT1}, 24576")
        e(f"buffer_store_dwordx4 {vr(vS+4*u,4)}, v{vL16}, {srd(sPX)}, s{sT1} offen offset:{(u%3)*1024} sc1")
    e(f"s_lshl_b32 s{sT1}, s{sT0}, 7"); e(f"s_lshl_b32 s{sT2}, s{sG}, 2"); e(f"s_add_u32 s{sT1}, s{sT1}, s{sT2}")
    e("v_lshlrev_b32 v2, 7, v0")
    e("s_waitcnt vmcnt(0)")
    e("s_mov_b64 exec, 3")
    e(f"buffer_store_dword v4, v2, {srd(sMB)}, s{sT1} offen offset:32 sc1")
    e("s_mov_b64 exec, -1")
    e("s_cmp_eq_u32 s3, 3"); e("s_cbranch_scc1 L_fin")
    e(f"s_lshl_b32 s{sT1}, s2, 7"); e(f"s_mov_b32 s{sSPIN}, {cfg.spin}")
    l1, l2 = lab("p2"), lab("p2d")
    e(f"{l1}:"); e(f"buffer_load_dwordx4 v[8:11], v3, {srd(sMB)}, s{sT1} offen offset:32 sc1"); e(f"buffer_load_dwordx4 v[12:15], v3, {srd(sMB)}, s{sT1} offen offset:48 sc1"); e("s_waitcnt vmcnt(0)")
    for k in range(9, 16): e(f"v_and_b32 v8, v8, v{k}")
    e(f"v_readfirstlane_b32 s{sFL}, v8")
    e(f"s_cmp_eq_u32 s{sFL}, 1"); e(f"s_cbranch_scc1 {l2}")
    e(f"s_sub_u32 s{sSPIN}, s{sSPIN}, 1"); e(f"s_cmp_eq_u32 s{sSPIN}, 0"); e(f"s_cbranch_scc0 {l1}")
    e(f"{l2}:")
    e(f"s_mul_i32 s{sT1}, s2, 24576"); e(f"s_lshl_b32 s{sT2}, s3, 10"); e(f"s_add_u32 s{sT1}, s{sT1}, s{sT2}")
    for g in range(8):
        e(f"buffer_load_dwordx4 {vr(vO+4*g,4)}, v{vL16}, {srd(sPX)}, s{sT1} offen sc1")
        if g < 7: e(f"s_add_u32 s{sT1}, s{sT1}, 3072")
    e(f"s_mul_i32 s{sT0}, s{sG}, 3"); e(f"s_add_u32 s{sT0}, s{sT0}, s3")
    e(f"s_mul_i32 s{sT1}, s{sT0}, 43"); e(f"s_lshr_b32 s{sT1}, s{sT1}, 8")
    e(f"s_mul_i32 s{sT2}, s{sT1}, 6"); e(f"s_sub_u32 s{sT2}, s{sT0}, s{sT2}")
    e(f"s_lshl_b32 s{sT1}, s{sT1}, 6")
    e(f"s_and_b32 s{sT3}, s{sT2}, 1"); e(f"s_lshl_b32 s{sT3}, s{sT3}, 5"); e(f"s_add_u32 s{sT1}, s{sT1}, s{sT3}")
    e(f"s_lshr_b32 s{sT2}, s{sT2}, 1"); e(f"s_lshl_b32 s{sT2}, s{sT2}, 15"); e(f"s_add_u32 s{sT1}, s{sT1}, s{sT2}")
    e(f"s_lshl_b32 s{sT2}, s{sJ}, 8"); e(f"s_add_u32 s{sT1}, s{sT1}, s{sT2}")
    e(f"s_mul_i32 s{sT2}, s{sB}, 98304"); e(f"s_add_u32 s{sT1}, s{sT1}, s{sT2}")
    e("v_and_b32 v2, 31, v0"); e("v_lshrrev_b32 v5, 5, v0"); e("v_lshlrev_b32 v5, 4, v5"); e("v_lshl_add_u32 v2, v2, 10, v5")
    e(f"s_mov_b32 s{sT2}, 0xffff0000")
    for g in range(8):
        e(f"s_waitcnt vmcnt({7-g})")
        for k in range(4):
            r = vO + 4 * g + k
            if g == 0:
                e(f"v_lshlrev_b32 v{vS+2*k}, 16, v{r}"); e(f"v_and_b32 v{vS+2*k+1}, s{sT2}, v{r}")
            else:
                e(f"v_lshlrev_b32 v6, 16, v{r}"); e(f"v_and_b32 v7, s{sT2}, v{r}")
                e(f"v_add_f32 v{vS+2*k}, v{vS+2*k}, v6"); e(f"v_add_f32 v{vS+2*k+1}, v{vS+2*k+1}, v7")
    for k in range(4): e(f"v_cvt_pk_bf16_f32 v{8+k}, v{vS+2*k}, v{vS+2*k+1}")
    e(f"buffer_store_dwordx4 v[8:11], v2, {srd(sOUT)}, s{sT1} offen")
    e("L_fin:")
    if cfg.stamps:
        e("s_waitcnt vmcnt(0)"); stamp(7)
        e(f"s_lshl_b32 s{sT0}, s2, 7"); e(f"s_add_u32 s{sT0}, s{sT0}, 0xFF00000"); e(f"s_add_u32 s18, s18, s{sT0}"); e("s_addc_u32 s19, s19, 0")
        e("v_mov_b32 v30, 0")
        lw3 = lab("w3")
        e("s_cmp_eq_u32 s3, 3"); e(f"s_cbranch_scc1 {lw3}")
        e("s_cmp_eq_u32 s3, 0"); e("s_cbranch_scc0 L_end")
        for k in (0, 1, 2, 4, 5, 6, 7):
            e(f"v_mov_b32 v{32+2*k}, s{80+2*k}"); e(f"v_mov_b32 v{33+2*k}, s{81+2*k}"); e(f"global_store_dwordx2 v30, v[{32+2*k}:{33+2*k}], s[18:19] offset:{8*k}")
        e("s_endpgm")
        e(f"{lw3}:")
        e("v_mov_b32 v32, s86"); e("v_mov_b32 v33, s87"); e("global_store_dwordx2 v30, v[32:33], s[18:19] offset:24")
    e("L_end:"); e("s_endpgm")
    m5 = p.mark()
    p.raw('.section .rodata,"a"'); p.raw(".p2align 6"); p.raw(f".amdhsa_kernel {KN}")
    for l in ["next_free_vgpr 512", "next_free_sgpr 102", "accum_offset 256", "group_segment_fixed_size 0", "kernarg_size 64", "user_sgpr_count 2", "user_sgpr_kernarg_segment_ptr 1", "system_sgpr_workgroup_id_x 1"]:
        p.raw("  .amdhsa_" + l)
    p.raw(".end_amdhsa_kernel")
    bad = p.check_trace([(m0_, m2), (m1, m2), (m2, m3), (m4, m5)], "compute")
    assert bad == 0
    print("nops added:", p.nops_added, "instrs:", sum(1 for i in p.ins if i.op), "loop instrs:", sum(1 for i in p.ins[m1:m2] if i.op), file=sys.stderr)
    return p.text()

if __name__ == "__main__":
    cfg = Cfg()
    out = sys.argv[1]
    for a in sys.argv[2:]:
        k, v = a.split("=", 1)
        old = getattr(cfg, k)
        setattr(cfg, k, v if isinstance(old, str) else type(old)(int(v)))
    open(out, "w").write(gen(cfg))
```
